```python
import torch

def _softmax(x, axis=-1):
    return torch.softmax(x, dim=axis)

def _gelu(x):
    return torch.nn.functional.gelu(x, approximate='tanh')

def _silu(x):
    return torch.nn.functional.silu(x)

def _sigmoid(x):
    return torch.sigmoid(x)

def _layernorm(x, axis=-1, eps=1e-05):
    m = x.mean(dim=axis, keepdim=True)
    v = x.var(dim=axis, keepdim=True, unbiased=False)
    return (x - m) / torch.sqrt(v + eps)

def _scatter_add(tgt, idx, src, axis=0):
    return tgt.clone().index_add_(axis, idx, src)

def _segment_sum(src, seg, n):
    out = torch.zeros((n,) + src.shape[1:], dtype=src.dtype)
    return out.index_add_(0, seg, src)

def _pad(x, pw):
    flat = tuple((v for pair in reversed(pw) for v in pair))
    return torch.nn.functional.pad(x, flat)
kernel_name = 'adaLN_cond__ssm_conv_h3__glu_gated_glu__prompt'

def setup_inputs():

    _w = lambda a: (lambda t: t.to(torch.bfloat16) if t.is_floating_point() else t)(torch.as_tensor(a))

    def _A_setup():
        B, S, D = (1, 2048, 576)
        ks = 4
        return {'q': _w((lambda *s: torch.randn(*s, dtype=torch.bfloat16) * 0.05)(B, S, D)), 'k': _w((lambda *s: torch.randn(*s, dtype=torch.bfloat16) * 0.8)(B, S, D)), 'v': _w((lambda *s: torch.randn(*s, dtype=torch.bfloat16) * 0.8)(B, S, D)), 'shift_k': _w((lambda *s: torch.randn(*s, dtype=torch.bfloat16) * 0.8)(D, ks) * 0.5), 'ssm_k': _w((lambda *s: torch.randn(*s, dtype=torch.bfloat16) * 0.8)(D, S) * (1.0 / S ** 0.5)), 'ssm_D': _w((lambda *s: torch.randn(*s, dtype=torch.bfloat16) * 0.8)(D))}
    _A_in = _A_setup()

    def _B_setup():
        B, S, D, F = (1, 2048, 576, 4608)
        return {'x': _w((lambda *s: torch.randn(*s, dtype=torch.bfloat16) * 0.05)(B, S, D)), 'w_gate': _w((lambda *s: torch.randn(*s, dtype=torch.bfloat16) * 0.05)(D, F)), 'w_up': _w((lambda *s: torch.randn(*s, dtype=torch.bfloat16) * 0.05)(D, F)), 'w_down': _w((lambda *s: torch.randn(*s, dtype=torch.bfloat16) * 0.05)(F, D))}
    _B_in = _B_setup()
    return {'A_q': _A_in['q'], 'A_k': _A_in['k'], 'A_v': _A_in['v'], 'A_shift_k': _A_in['shift_k'], 'A_ssm_k': _A_in['ssm_k'], 'A_ssm_D': _A_in['ssm_D'], 'B_x': _B_in['x'], 'B_w_gate': _B_in['w_gate'], 'B_w_up': _B_in['w_up'], 'B_w_down': _B_in['w_down'], 'c': _w((lambda *s: torch.randn(*s, dtype=torch.bfloat16) * 0.1)(1, 576) * 8.0), 'w_mod': _w((lambda *s: torch.randn(*s, dtype=torch.bfloat16) * 0.1)(576, 6 * 576) * 576 ** (-0.5) * 8.0)}

def reference(A_q, A_k, A_v, A_shift_k, A_ssm_k, A_ssm_D, B_x, B_w_gate, B_w_up, B_w_down, c, w_mod):

    def _A_ref(q, k, v, shift_k, ssm_k, ssm_D):
        B, S, D = q.shape
        ks = shift_k.shape[-1]
        k_pad = _pad(k, ((0, 0), (ks - 1, 0), (0, 0)))
        k_shift = torch.zeros_like(k)
        for t in range(ks):
            k_shift = k_shift + k_pad[:, t:t + S, :] * shift_k[:, ks - 1 - t][None, None, :]
        kv = k_shift * v
        L = 2 * S
        kv_pad = _pad(kv, ((0, 0), (0, S), (0, 0)))
        kf_pad = _pad(ssm_k, ((0, 0), (0, S)))
        kv_f = (lambda x, axes=(-2, -1): torch.fft.rfft2(x.float(), dim=axes))(kv_pad[:, None, :, :], axes=(1, 2))
        kf_f = (lambda x, axes=(-2, -1): torch.fft.rfft2(x.float(), dim=axes))(kf_pad[:, None, :], axes=(1, 2))
        kf_f = (lambda x, *d: x.permute(*d))(kf_f, 1, 2, 0)
        y_f = kv_f * kf_f[None, :, :, :]
        y = (lambda x, s, axes=(-2, -1): torch.fft.irfft2(x, s=s, dim=axes).to(torch.bfloat16))(y_f, (1, L), axes=(1, 2))[:, 0, :S, :]
        y = y + kv * ssm_D[None, None, :]
        return q * y

    def _B_ref(x, w_gate, w_up, w_down):
        g = torch.einsum('bsd,df->bsf', x, w_gate)
        u = torch.einsum('bsd,df->bsf', x, w_up)
        h = _sigmoid(g) * u
        return torch.einsum('bsf,fd->bsd', h, w_down)
    x = A_q
    mod = (_silu(c) @ w_mod).reshape(c.shape[0], 6, 1, -1)
    sa, ca, ga, sb, cb, gb = (mod[:, 0].clone(), mod[:, 1].clone(), mod[:, 2].clone(), mod[:, 3].clone(), mod[:, 4].clone(), mod[:, 5].clone())
    h = _layernorm(x, axis=-1) * (1 + ca) + sa
    x = x + ga * _A_ref(h, A_k, A_v, A_shift_k, A_ssm_k, A_ssm_D)
    h = _layernorm(x, axis=-1) * (1 + cb) + sb
    x = x + gb * _B_ref(h, B_w_gate, B_w_up, B_w_down)
    return x
```

```python
import re

TRANS = ("v_exp_f32", "v_log_f32", "v_rcp_f32", "v_rsq_f32", "v_sqrt_f32", "v_sin_f32", "v_cos_f32")
_REG = re.compile(r"\b([vas])(?:(\d+)|\[(\d+):(\d+)\])")


def regs_of(op):
    out = []
    for m in _REG.finditer(op):
        t = m.group(1)
        if m.group(2) is not None:
            out.append((t, int(m.group(2))))
        else:
            out += [(t, i) for i in range(int(m.group(3)), int(m.group(4)) + 1)]
    if re.search(r"\bvcc\b", op):
        out.append(("s", "vcc"))
    if re.search(r"\bm0\b", op):
        out.append(("s", "m0"))
    if re.search(r"\bexec\b", op):
        out.append(("s", "exec"))
    return out


def split_ops(s):
    ops, depth, cur = [], 0, ""
    for ch in s:
        if ch == "[":
            depth += 1
        if ch == "]":
            depth -= 1
        if ch == "," and depth == 0:
            ops.append(cur.strip())
            cur = ""
        else:
            cur += ch
    if cur.strip():
        ops.append(cur.strip())
    return ops


class Ins:
    __slots__ = ("text", "mn", "kind", "w", "r", "srcc", "passes", "pos")


class K:
    def __init__(self, name):
        self.name = name
        self.lines = []
        self.hist = []
        self.pos = 0
        self.vm = []
        self.lg = []
        self.maxv = 0
        self.maxa = -1
        self.maxs = 0
        self.n_ins = 0
        self.n_nop = 0

    def raw(self, text):
        self.lines.append(text)

    def label(self, name):
        self.lines.append(name + ":")

    def comment(self, text):
        self.lines.append("    ; " + text)

    def classify(self, text):
        t = text.strip()
        mn, _, rest = t.partition(" ")
        ops = split_ops(rest)
        I = Ins()
        I.text, I.mn, I.srcc, I.passes = t, mn, [], 0
        R = lambda lst: [x for o in lst for x in regs_of(o)]
        if mn.startswith("v_mfma"):
            I.kind = "mfma"
            I.w = regs_of(ops[0])
            I.r = R(ops[1:3])
            I.srcc = regs_of(ops[3])
            I.passes = 8 if "32x32" in mn else 4
        elif mn.startswith("v_cmp"):
            I.kind = "valu"
            I.w = regs_of(ops[0])
            I.r = R(ops[1:])
        elif mn.startswith("v_permlane"):
            I.kind = "permlane"
            I.w = R(ops[:2])
            I.r = R(ops[:2])
        elif mn.startswith("v_readfirstlane") or mn.startswith("v_readlane"):
            I.kind = "readlane"
            I.w = regs_of(ops[0])
            I.r = R(ops[1:])
        elif mn.startswith("v_"):
            I.kind = "trans" if mn.split("_e")[0] in TRANS or mn in TRANS else "valu"
            if "dpp" in mn or "row_" in t or "quad_perm" in t:
                I.kind = "dpp"
            I.w = regs_of(ops[0])
            I.r = R(ops[1:])
            if mn.startswith("v_fmac") or mn.startswith("v_pk_fmac") or mn.startswith("v_dot2c"):
                I.r += I.w
            if "_co_" in mn:
                I.w += regs_of(ops[1])
                I.r = R(ops[2:])
        elif mn.startswith("ds_read") or mn.startswith("ds_bpermute") or mn.startswith("ds_swizzle"):
            I.kind = "dsr"
            I.w = regs_of(ops[0])
            I.r = R(ops[1:])
        elif mn.startswith("ds_"):
            I.kind = "dsw"
            I.w = []
            I.r = R(ops)
        elif mn.startswith("buffer_load") or mn.startswith("global_load"):
            if t.endswith(" lds") or " lds " in t or "load_lds" in mn:
                I.kind = "dma"
                I.w = []
                I.r = R(ops) + [("s", "m0")]
            else:
                I.kind = "vload"
                I.w = regs_of(ops[0])
                I.r = R(ops[1:])
        elif mn.startswith("buffer_store") or mn.startswith("global_store"):
            I.kind = "vstore"
            I.w = []
            I.r = R(ops)
        elif mn.startswith("buffer_atomic") or mn.startswith("global_atomic"):
            I.kind = "vatomic"
            I.w = regs_of(ops[0]) if " sc0" in t else []
            I.r = R(ops)
        elif mn.startswith("buffer_"):
            I.kind = "vmisc"
            I.w = []
            I.r = []
        elif mn.startswith("s_"):
            I.kind = "salu"
            if mn.startswith("s_cmp") or mn.startswith("s_cbranch") or mn in (
                "s_waitcnt", "s_barrier", "s_nop", "s_branch", "s_endpgm", "s_setprio", "s_sleep"):
                I.w = []
                I.r = R(ops)
            else:
                I.w = regs_of(ops[0]) if ops else []
                I.r = R(ops[1:])
                if "saveexec" in mn:
                    I.w += [("s", "exec")]
        else:
            raise ValueError("unknown instr " + t)
        return I

    def need(self, I):
        need = 0
        VAL = ("valu", "trans", "dpp", "permlane", "readlane")
        rs, ws, cs = set(I.r), set(I.w), set(I.srcc)
        for P in reversed(self.hist):
            d = self.pos - P.pos - 1
            if d > 24:
                break
            pw = set(P.w)
            req = 0
            if P.kind in VAL:
                vw = {x for x in pw if x[0] != "s"}
                sw = {x for x in pw if x[0] == "s"}
                if I.kind == "mfma" and vw & (rs | cs):
                    req = max(req, 2)
                if I.kind in ("permlane", "dpp") and vw & rs:
                    req = max(req, 2)
                if I.kind == "readlane" and vw & rs:
                    req = max(req, 1)
                if P.kind == "trans" and I.kind in VAL and I.kind != "trans" and vw & (rs | ws):
                    req = max(req, 1)
                if P.kind == "trans" and I.kind == "trans" and vw & rs:
                    req = max(req, 1)
                if ("sdwa" in P.mn or "op_sel" in P.text) and I.kind in VAL and vw & (rs | ws):
                    req = max(req, 1)
                if sw & rs:
                    if I.kind in VAL:
                        req = max(req, 4 if I.kind == "readlane" else 2)
                    if I.kind in ("vload", "vstore", "dma", "vatomic"):
                        req = max(req, 5)
                    if I.kind == "salu":
                        req = max(req, 1)
                if ("s", "exec") in sw:
                    req = max(req, 5)
            if P.kind == "mfma":
                big = {4: 8, 8: 12}[P.passes]
                ovl = {4: 6, 8: 10}[P.passes]
                war = {4: 3, 8: 7}[P.passes]
                if I.kind == "mfma":
                    if pw & rs:
                        req = max(req, big)
                    if pw & cs and not (P.w == I.srcc and P.passes == I.passes):
                        req = max(req, ovl)
                    if pw & ws and not (P.w == I.w and P.w == I.srcc):
                        req = max(req, ovl)
                else:
                    if pw & (rs | ws):
                        req = max(req, big)
                    if I.kind in VAL and set(P.srcc) & ws:
                        req = max(req, war)
            if P.kind == "salu" and ("s", "m0") in pw and I.kind == "dma":
                req = max(req, 1)
            if P.kind in ("vstore", "vatomic") and ("x4" in P.mn or "x3" in P.mn):
                if {x for x in P.r if x[0] != "s"} & ws:
                    req = max(req, 2)
            if req > d:
                need = max(need, req - d)
        return need

    def i(self, text, tag=None):
        I = self.classify(text)
        n = self.need(I)
        while n > 0:
            k = min(n, 16)
            self.lines.append(f"    s_nop {k - 1}")
            self.pos += k
            self.n_nop += 1
            n -= k
        I.pos = self.pos
        if I.mn == "s_nop":
            self.pos += int(text.split()[1]) + 1
        else:
            self.pos += 1
        self.hist.append(I)
        if len(self.hist) > 40:
            self.hist.pop(0)
        self.lines.append("    " + I.text)
        self.n_ins += 1
        for t, n_ in I.w + I.r + I.srcc:
            if isinstance(n_, int):
                if t == "v":
                    self.maxv = max(self.maxv, n_)
                elif t == "a":
                    self.maxa = max(self.maxa, n_)
                else:
                    self.maxs = max(self.maxs, n_)
        if I.kind in ("vload", "vstore", "dma", "vatomic"):
            self.vm.append(tag)
            assert len(self.vm) <= 63, "too many outstanding vmem ops"
        if I.kind in ("dsr", "dsw"):
            self.lg.append(tag)
            if len(self.lg) > 15:
                pass
        return I

    def many(self, text):
        for ln in text.strip().splitlines():
            ln = ln.split(";")[0].strip()
            if ln:
                self.i(ln)

    def _wait(self, q, tags, name, cap):
        if not isinstance(tags, (list, set)):
            tags = [tags]
        last = -1
        for idx, t in enumerate(q):
            if t in tags:
                last = idx
        if last < 0:
            return None
        n = len(q) - 1 - last
        if n > cap:
            n = cap
        del q[: len(q) - n]
        return f"{name}({n})"

    def wait(self, vm=None, lg=None):
        parts = []
        if vm is not None:
            p = self._wait(self.vm, vm, "vmcnt", 63)
            if p:
                parts.append(p)
        if lg is not None:
            p = self._wait(self.lg, lg, "lgkmcnt", 15)
            if p:
                parts.append(p)
        if parts:
            self.i("s_waitcnt " + " ".join(parts))

    def wait_all(self, vm=True, lg=True):
        parts = []
        if vm:
            parts.append("vmcnt(0)")
            self.vm = []
        if lg:
            parts.append("lgkmcnt(0)")
            self.lg = []
        self.i("s_waitcnt " + " ".join(parts))

    def fence(self, n=16):
        self.i(f"s_nop {n - 1}")

    def srd(self, d, lo, hi, nbytes):
        self.i(f"s_mov_b32 s{d}, {lo}")
        self.i(f"s_mov_b32 s{d + 1}, {hi}")
        self.i(f"s_mov_b32 s{d + 2}, {nbytes}")
        self.i(f"s_mov_b32 s{d + 3}, 0x00020000")

    def text(self):
        hdr = [f".globl {self.name}", ".p2align 8", f".type {self.name},@function", f"{self.name}:"]
        return "\n".join(hdr + self.lines) + "\n"

    def descriptor(self, vgpr=None, accum=None, sgpr=None):
        nv = self.maxv + 1
        acc = accum if accum is not None else (nv + 3) // 4 * 4
        assert acc >= nv
        tot = acc + self.maxa + 1 if self.maxa >= 0 else nv
        if vgpr is not None:
            assert vgpr >= tot
            tot = vgpr
        ns = max(self.maxs + 1, 8) if sgpr is None else sgpr
        return f""".p2align 6
.amdhsa_kernel {self.name}
  .amdhsa_next_free_vgpr {tot}
  .amdhsa_next_free_sgpr {ns}
  .amdhsa_accum_offset {acc}
  .amdhsa_group_segment_fixed_size 0
  .amdhsa_kernarg_size 120
  .amdhsa_user_sgpr_count 2
  .amdhsa_user_sgpr_kernarg_segment_ptr 1
  .amdhsa_system_sgpr_workgroup_id_x 1
  .amdhsa_float_denorm_mode_32 3
.end_amdhsa_kernel
"""
```

```python
import sys
from asmlib import K

S, D, F = 2048, 576, 4608
A_Q, A_K, A_V, A_SHK, A_SSMK, A_SSMD, A_BX, A_WG, A_WU, A_WD, A_C, A_WMOD, A_OUT, A_DBG, A_WS = range(0, 120, 8)

UP = 4224
WS_U = 0
WS_MOD = 0x280000
WS_YT = 0x290000
WS_X1 = 0x4E0000
WS_H2 = 0x730000
WS_WT1 = 0x980000
WS_WT2 = 0x1400000
WS_HH = 0x1A00000
WS_PART = 0x2D00000
assert WS_U + 576 * UP <= WS_MOD and WS_MOD + 3456 * 4 <= WS_YT and WS_YT + S * D * 2 <= WS_X1
assert WS_X1 + S * D * 2 <= WS_H2 and WS_H2 + S * D * 2 <= WS_WT1 and WS_WT1 + 2 * D * F * 2 <= WS_WT2
assert WS_WT2 + D * F * 2 <= WS_HH and WS_HH + S * F * 2 <= WS_PART
WS_END = WS_PART + 4 * S * D * 4
NACT = S * D * 2

LOG2E = 0x3FB8AA3B
NLOG2E = 0xBFB8AA3B


def ws_srd(k, d, wsreg, off, nbytes):
    k.i(f"s_add_u32 s{d}, s{wsreg}, 0x{off:x}")
    k.i(f"s_addc_u32 s{d + 1}, s{wsreg + 1}, 0")
    k.i(f"s_mov_b32 s{d + 2}, 0x{nbytes:x}")
    k.i(f"s_mov_b32 s{d + 3}, 0x00020000")


def unpack(k, dst, src):
    k.i(f"v_lshlrev_b32 v{dst}, 16, v{src}")
    k.i(f"v_and_b32 v{dst + 1}, 0xffff0000, v{src}")


def reset(k):
    k.vm, k.lg, k.hist = [], [], []


def gen_k1():
    k = K("k1_kernel")
    NKV, NMV = 288, 54
    k.i(f"s_cmp_ge_u32 s2, {NKV + NMV}")
    k.i("s_cbranch_scc1 K1_END")
    k.i(f"s_cmp_ge_u32 s2, {NKV}")
    k.i("s_cbranch_scc1 K1_GEMV")
    k.i(f"s_load_dwordx4 s[4:7], s[0:1], {A_K}")
    k.i(f"s_load_dwordx2 s[8:9], s[0:1], {A_SHK}")
    k.i(f"s_load_dwordx2 s[10:11], s[0:1], {A_WS}")
    k.i("s_mov_b32 s12, 0x1C71C71D")
    k.i("s_mul_hi_u32 s13, s2, s12")
    k.i("s_mul_i32 s14, s13, 9")
    k.i("s_sub_u32 s14, s2, s14")
    k.i("v_and_b32 v1, 7, v0")
    k.i("v_lshrrev_b32 v2, 3, v0")
    k.i("s_mul_i32 s15, s13, 64*1152")
    k.i("s_lshl_b32 s16, s14, 7")
    k.i("s_add_u32 s15, s15, s16")
    k.i("v_mul_u32_u24 v3, 2304, v2")
    k.i("v_lshl_add_u32 v3, v1, 4, v3")
    k.i("v_add_u32 v3, s15, v3")
    k.i("s_waitcnt lgkmcnt(0)")
    k.srd(20, "s4", "s5", NACT)
    k.srd(24, "s6", "s7", NACT)
    k.srd(28, "s8", "s9", 576 * 8)
    ws_srd(k, 32, 10, WS_U, 576 * UP)
    for i in range(5):
        k.i(f"v_add_u32 v4, {(i - 3) * 1152 & 0xffffffff}, v3") if i != 3 else k.i("v_mov_b32 v4, v3")
        k.i(f"buffer_load_dwordx4 v[{8 + 4 * i}:{11 + 4 * i}], v4, s[20:23], 0 offen", tag="k")
    k.i("buffer_load_dwordx4 v[28:31], v3, s[24:27], 0 offen", tag="v")
    k.i("buffer_load_dwordx4 v[32:35], v3, s[24:27], 0 offen offset:1152", tag="v")
    k.i("s_lshl_b32 s17, s14, 9")
    k.i("v_lshlrev_b32 v5, 6, v1")
    for i in range(4):
        k.i(f"buffer_load_dwordx4 v[{36 + 4 * i}:{39 + 4 * i}], v5, s[28:31], s17 offen offset:{16 * i}", tag="w")
    P = 144
    k.i(f"v_mul_u32_u24 v6, {2 * P}, v2")
    k.i("v_lshl_add_u32 v6, v1, 4, v6")
    k.i("v_and_b32 v1, 63, v0")
    k.i("v_lshrrev_b32 v2, 6, v0")
    k.i("v_lshrrev_b32 v4, 4, v1")
    k.i("v_bfe_u32 v5, v1, 2, 2")
    k.i("v_lshl_add_u32 v5, v4, 3, v5")
    k.i("v_sub_u32 v5, 27, v5")
    k.i(f"v_mul_u32_u24 v5, {P}, v5")
    k.i("v_lshl_add_u32 v5, v2, 5, v5")
    k.i("v_and_b32 v7, 3, v1")
    k.i("v_lshl_add_u32 v5, v7, 3, v5")
    k.i("v_and_b32 v7, 15, v1")
    k.i("v_lshl_add_u32 v7, v2, 4, v7")
    k.i(f"v_mul_u32_u24 v7, {UP}, v7")
    k.i("v_lshl_add_u32 v7, v4, 4, v7")
    k.i(f"s_mul_i32 s18, s14, {64 * UP}")
    k.i("s_lshl_b32 s19, s13, 7")
    k.i("s_sub_u32 s19, 3968, s19")
    k.i("s_add_u32 s19, s19, s18")
    KU, VU, WU, T = 52, 92, 108, 140
    k.wait(vm="w")
    for ch in range(8):
        a, b = 36 + 2 * ch, 37 + 2 * ch
        k.i(f"v_lshlrev_b32 v{WU + 0 * 8 + ch}, 16, v{a}")
        k.i(f"v_and_b32 v{WU + 1 * 8 + ch}, 0xffff0000, v{a}")
        k.i(f"v_lshlrev_b32 v{WU + 2 * 8 + ch}, 16, v{b}")
        k.i(f"v_and_b32 v{WU + 3 * 8 + ch}, 0xffff0000, v{b}")
    for i in range(5):
        for p in range(4):
            unpack(k, KU + 8 * i + 2 * p, 8 + 4 * i + p)
    for o in range(2):
        for p in range(4):
            unpack(k, VU + 8 * o + 2 * p, 28 + 4 * o + p)
    ch8 = [(o, p) for o in range(2) for p in range(4)]
    ACC = T
    PR = T + 16
    PK = 8

    def pr(base, o, p):
        a = base + 8 * o + 2 * p
        return f"v[{a}:{a + 1}]", a

    def rnd(base):
        for n, (o, p) in enumerate(ch8):
            _, a = pr(base, o, p)
            k.i(f"v_cvt_pk_bf16_f32 v{PK + n}, v{a}, v{a + 1}")
        for n, (o, p) in enumerate(ch8):
            _, a = pr(base, o, p)
            unpack(k, a, PK + n)

    for step in range(4):
        j = 3 - step
        dst = ACC if step == 0 else PR
        for (o, p) in ch8:
            a = KU + 8 * (o + step) + 2 * p
            w = WU + 8 * j + 2 * p
            k.i(f"v_pk_mul_f32 {pr(dst, o, p)[0]}, v[{a}:{a + 1}], v[{w}:{w + 1}]")
        rnd(dst)
        if step:
            for (o, p) in ch8:
                k.i(f"v_pk_add_f32 {pr(ACC, o, p)[0]}, {pr(ACC, o, p)[0]}, {pr(PR, o, p)[0]}")
            rnd(ACC)
    for (o, p) in ch8:
        k.i(f"v_pk_mul_f32 {pr(ACC, o, p)[0]}, {pr(ACC, o, p)[0]}, {pr(VU, o, p)[0]}")
    for n, (o, p) in enumerate(ch8):
        _, a = pr(ACC, o, p)
        k.i(f"v_cvt_pk_bf16_f32 v{PK + n}, v{a}, v{a + 1}")
    k.i(f"ds_write_b128 v6, v[{PK}:{PK + 3}]")
    k.i(f"ds_write_b128 v6, v[{PK + 4}:{PK + 7}] offset:{P}")
    k.wait_all(vm=False)
    k.i("s_barrier")
    for hf in range(2):
        for e in range(2):
            r = 16 + 4 * hf + 2 * e
            k.i(f"ds_read_b64_tr_b16 v[{r}:{r + 1}], v5 offset:{(36 - 32 * hf - 4 * e) * P}", tag=hf)
    for hf in range(2):
        k.wait(lg=hf)
        k.i(f"buffer_store_dwordx4 v[{16 + 4 * hf}:{19 + 4 * hf}], v7, s[32:35], s19 offen offset:{64 * hf}")
    k.i("s_cmp_lg_u32 s13, 0")
    k.i("s_cbranch_scc1 K1_END")
    for r in range(24, 28):
        k.i(f"v_mov_b32 v{r}, 0")
    k.i("s_add_u32 s18, s18, 4096")
    k.i("buffer_store_dwordx4 v[24:27], v7, s[32:35], s18 offen")
    k.i("s_endpgm")

    k.label("K1_GEMV")
    reset(k)
    k.i(f"s_load_dwordx4 s[4:7], s[0:1], {A_C}")
    k.i(f"s_load_dwordx2 s[10:11], s[0:1], {A_WS}")
    k.i(f"s_sub_u32 s12, s2, {NKV}")
    k.i("v_and_b32 v1, 7, v0")
    k.i("v_lshrrev_b32 v2, 3, v0")
    k.i(f"v_mul_u32_u24 v3, {18 * 6912}, v2")
    k.i("v_lshl_add_u32 v3, v1, 4, v3")
    k.i("s_lshl_b32 s13, s12, 7")
    k.i("v_add_u32 v3, s13, v3")
    k.i("v_mul_u32_u24 v4, 36, v2")
    k.i("s_waitcnt lgkmcnt(0)")
    k.srd(20, "s4", "s5", 1152)
    k.srd(24, "s6", "s7", 576 * 6912)
    ws_srd(k, 32, 10, WS_MOD, 3456 * 4)
    k.i("buffer_load_dwordx4 v[8:11], v4, s[20:23], 0 offen", tag="c")
    k.i("buffer_load_dwordx4 v[12:15], v4, s[20:23], 0 offen offset:16", tag="c")
    k.i("buffer_load_dword v16, v4, s[20:23], 0 offen offset:32", tag="c")
    WR = 40
    for i in range(18):
        k.i(f"s_mov_b32 s14, {i * 6912}")
        k.i(f"buffer_load_dwordx4 v[{WR + 4 * i}:{WR + 3 + 4 * i}], v3, s[24:27], s14 offen", tag=("w", i))
    SC, TM = 20, 112
    k.wait(vm="c")
    for p in range(9):
        unpack(k, SC + 2 * p, 8 + p)
    for i in range(18):
        k.i(f"v_mul_f32 v{TM + i}, 0x{NLOG2E:x}, v{SC + i}")
    for i in range(18):
        k.i(f"v_exp_f32 v{TM + i}, v{TM + i}")
    for i in range(18):
        k.i(f"v_add_f32 v{TM + i}, 1.0, v{TM + i}")
    for i in range(18):
        k.i(f"v_rcp_f32 v{TM + i}, v{TM + i}")
    for i in range(18):
        k.i(f"v_mul_f32 v{SC + i}, v{SC + i}, v{TM + i}")
    for p in range(9):
        k.i(f"v_cvt_pk_bf16_f32 v{8 + p}, v{SC + 2 * p}, v{SC + 2 * p + 1}")
    for p in range(9):
        unpack(k, SC + 2 * p, 8 + p)
    AC = 8
    for i in range(18):
        k.wait(vm=("w", i))
        for p in range(4):
            unpack(k, TM + 2 * p, WR + 4 * i + p)
        for ch in range(8):
            if i == 0:
                k.i(f"v_mul_f32 v{AC + ch}, v{SC + i}, v{TM + ch}")
            else:
                k.i(f"v_fmac_f32 v{AC + ch}, v{SC + i}, v{TM + ch}")
    k.i("v_lshlrev_b32 v5, 8, v2")
    k.i("v_lshl_add_u32 v5, v1, 5, v5")
    k.i("ds_write_b128 v5, v[8:11]")
    k.i("ds_write_b128 v5, v[12:15] offset:16")
    k.wait_all(vm=False)
    k.i("s_barrier")
    k.i("v_readfirstlane_b32 s15, v0")
    k.i("s_nop 3")
    k.i("s_cmp_ge_u32 s15, 64")
    k.i("s_cbranch_scc1 K1_END")
    k.i("v_lshlrev_b32 v5, 2, v0")
    for i in range(32):
        k.i(f"ds_read_b32 v{WR + i}, v5 offset:{256 * i}")
    k.wait_all(vm=False)
    n = 32
    while n > 1:
        n //= 2
        for i in range(n):
            k.i(f"v_add_f32 v{WR + i}, v{WR + i}, v{WR + n + i}")
    k.i(f"v_cvt_pk_bf16_f32 v6, v{WR}, v{WR}")
    k.i("v_lshlrev_b32 v6, 16, v6")
    k.i("v_add_f32 v7, 1.0, v6")
    k.i("v_cvt_pk_bf16_f32 v7, v7, v7")
    k.i("v_lshlrev_b32 v7, 16, v7")
    k.i("s_mov_b32 s16, 0x1C71C71D")
    k.i("s_mul_hi_u32 s16, s12, s16")
    k.i("s_cmp_eq_u32 s16, 1")
    k.i("s_cselect_b32 s17, 1, 0")
    k.i("s_cmp_eq_u32 s16, 4")
    k.i("s_cselect_b32 s17, 1, s17")
    k.i("s_cmp_eq_u32 s17, 1")
    k.i("s_cselect_b64 vcc, -1, 0")
    k.i("v_cndmask_b32 v6, v6, v7, vcc")
    k.i("s_lshl_b32 s13, s12, 8")
    k.i("buffer_store_dword v6, v5, s[32:35], s13 offen")
    k.label("K1_END")
    k.i("s_endpgm")
    return k, (NKV + NMV, 256, 64 * 144)


UCP, HCP, HOFF = 4640, 4224, 18560
WAVE_LDS = 36864


def gen_k2():
    k = K("k2_kernel")
    NCV, NW1, NW2 = 144, 72, 36
    k.i(f"s_cmp_ge_u32 s2, {NCV + NW1 + NW2}")
    k.i("s_cbranch_scc1 K2_END")
    k.i("v_lshrrev_b32 v2, 6, v0")
    k.i("v_and_b32 v1, 63, v0")
    k.i("v_readfirstlane_b32 s3, v2")
    k.i(f"s_load_dwordx2 s[10:11], s[0:1], {A_WS}")
    k.i(f"s_cmp_ge_u32 s2, {NCV + NW1}")
    k.i("s_cbranch_scc1 K2_W2")
    k.i(f"s_cmp_ge_u32 s2, {NCV}")
    k.i("s_cbranch_scc1 K2_W1")
    k.i(f"s_load_dwordx4 s[4:7], s[0:1], {A_SSMK}")
    k.i("s_lshl_b32 s12, s2, 2")
    k.i("s_add_u32 s12, s12, s3")
    k.i(f"s_mul_i32 s13, s3, {WAVE_LDS}")
    k.i(f"s_mul_i32 s14, s12, {UP}")
    k.i("s_lshl_b32 s15, s12, 12")
    k.i("v_lshlrev_b32 v3, 4, v1")
    k.i("s_waitcnt lgkmcnt(0)")
    k.i("s_add_u32 s20, s10, s14")
    k.i("s_addc_u32 s21, s11, 0")
    k.i(f"s_mov_b32 s22, {UP}")
    k.i("s_mov_b32 s23, 0x00020000")
    k.i("s_add_u32 s24, s4, s15")
    k.i("s_addc_u32 s25, s5, 0")
    k.i("s_mov_b32 s26, 4096")
    k.i("s_mov_b32 s27, 0x00020000")
    k.srd(28, "s6", "s7", 1152)
    ws_srd(k, 32, 10, WS_YT, NACT)
    for chi in range(2):
        k.i(f"s_add_u32 m0, s13, {HOFF + chi * HCP}")
        for i in range(4):
            k.i(f"buffer_load_dwordx4 v3, s[24:27], {8 + 8 * chi} offen offset:{1024 * i} lds", tag="dma")
    for psi in range(4):
        k.i(f"s_add_u32 m0, s13, {psi * UCP}")
        for i in range(4):
            k.i(f"buffer_load_dwordx4 v3, s[20:23], {(3 - psi) * 2} offen offset:{1024 * i} lds", tag="dma")
    k.i("v_and_b32 v4, 15, v1")
    k.i("v_lshrrev_b32 v5, 4, v1")
    SP = 8
    k.i("v_lshlrev_b32 v6, 3, v4")
    k.i("v_lshl_add_u32 v6, v5, 4, v6")
    for n, o in enumerate((-120, -112, -56, -48)):
        k.i(f"v_add_u32 v7, {o & 0xffffffff}, v6")
        k.i(f"buffer_load_dwordx2 v[{SP + 2 * n}:{SP + 2 * n + 1}], v7, s[24:27], 0 offen", tag="dma")
    k.i("s_lshl_b32 s16, s12, 1")
    k.i("v_mov_b32 v7, s16")
    k.i("buffer_load_ushort v16, v7, s[28:31], 0 offen", tag="dma")
    for r in range(20, 24):
        k.i(f"v_mov_b32 v{r}, 0")
    k.i("v_add_u32 v7, s13, v3")
    k.i("s_mov_b64 exec, 0xffffff")
    for psi in range(4):
        k.i(f"ds_write_b128 v7, v[20:23] offset:{psi * UCP + 4096}")
    k.i("s_mov_b64 exec, -1")
    k.i("v_and_b32 v7, 3, v4")
    k.i(f"v_mul_u32_u24 v17, {UCP}, v7")
    k.i("v_lshrrev_b32 v7, 2, v4")
    k.i("v_lshlrev_b32 v7, 7, v7")
    k.i("v_sub_u32 v17, v17, v7")
    k.i("v_lshl_add_u32 v17, v5, 4, v17")
    k.i("s_add_u32 s16, s13, 384")
    k.i("v_add_u32 v17, s16, v17")
    k.i("v_and_b32 v7, 1, v4")
    k.i(f"v_mul_u32_u24 v18, {HCP}, v7")
    k.i("v_lshrrev_b32 v7, 1, v4")
    k.i("v_add_u32 v7, v7, v5")
    k.i("v_lshl_add_u32 v18, v7, 4, v18")
    k.i(f"s_add_u32 s16, s13, {HOFF}")
    k.i("v_add_u32 v18, s16, v18")
    k.i("v_lshlrev_b32 v7, 7, v5")
    k.i("v_lshl_add_u32 v7, v4, 3, v7")
    k.i(f"s_add_u32 s16, s13, {3 * UCP + 504}")
    k.i("v_sub_u32 v19, s16, v7")
    k.i("v_lshrrev_b32 v7, 2, v4")
    k.i("v_lshl_add_u32 v7, v5, 2, v7")
    k.i("v_mul_u32_u24 v24, 18432, v7")
    k.i("v_and_b32 v7, 3, v4")
    k.i("v_lshl_add_u32 v24, v7, 3, v24")
    k.wait_all()
    ACC, FR = 32, 64

    def areg(b, c):
        return FR + (b & 1) * 64 + 4 * c

    def breg(b, a):
        if a == 0 and b < 2:
            return SP + 4 * b
        return FR + (b & 1) * 64 + 32 + 4 * a

    def reads(b):
        out = []
        for i in range(8):
            r = areg(b, i)
            out.append((f"ds_read_b128 v[{r}:{r + 3}], v17 offset:{64 * (56 - 8 * i + b)}", ("A", b, i)))
            if not (i == 0 and b < 2):
                r = breg(b, i)
                out.append((f"ds_read_b128 v[{r}:{r + 3}], v18 offset:{64 * (8 * i + b - 2)}", ("B", b, i)))
        return out

    for t, tag in reads(0):
        k.i(t, tag=tag)
    order = sorted([(c, a) for c in range(8) for a in range(8) if c + a <= 7], key=lambda x: (max(x), x[0] + x[1]))
    first = set()
    for b in range(8):
        nxt = reads(b + 1) if b < 7 else [
            (f"ds_read_b64 v[{FR + 2 * I}:{FR + 2 * I + 1}], v19 offset:{512 * (7 - I)}", ("kv", I)) for I in range(8)]
        for n, (c, a) in enumerate(order):
            I = c + a
            k.wait(lg=[("A", b, c), ("B", b, a)])
            A, B, C = areg(b, c), breg(b, a), ACC + 4 * I
            src = f"v[{C}:{C + 3}]" if I in first else "0"
            first.add(I)
            k.i(f"v_mfma_f32_16x16x32_bf16 v[{C}:{C + 3}], v[{A}:{A + 3}], v[{B}:{B + 3}], {src}")
            if n >= 2 and n % 2 == 0 and nxt:
                t, tag = nxt.pop(0)
                k.i(t, tag=tag)
        assert not nxt
    k.i("v_lshlrev_b32 v16, 16, v16")
    k.i("v_mov_b32 v17, v16")
    k.i("s_lshl_b32 s16, s12, 5")
    T = 128
    k.wait_all(vm=False)
    for I in range(8):
        t = T + 8 * (I & 3)
        q = FR + 2 * I
        C = ACC + 4 * I
        k.i(f"v_and_b32 v{t}, 0xffff0000, v{q + 1}")
        k.i(f"v_lshlrev_b32 v{t + 1}, 16, v{q + 1}")
        k.i(f"v_and_b32 v{t + 2}, 0xffff0000, v{q}")
        k.i(f"v_lshlrev_b32 v{t + 3}, 16, v{q}")
        k.i(f"v_pk_mul_f32 v[{t}:{t + 1}], v[{t}:{t + 1}], v[16:17]")
        k.i(f"v_pk_mul_f32 v[{t + 2}:{t + 3}], v[{t + 2}:{t + 3}], v[16:17]")
        k.i(f"v_cvt_pk_bf16_f32 v{t + 4}, v{t}, v{t + 1}")
        k.i(f"v_cvt_pk_bf16_f32 v{t + 5}, v{t + 2}, v{t + 3}")
        k.i(f"v_cvt_pk_bf16_f32 v{t + 6}, v{C}, v{C + 1}")
        k.i(f"v_cvt_pk_bf16_f32 v{t + 7}, v{C + 2}, v{C + 3}")
        unpack(k, t, t + 4)
        unpack(k, t + 2, t + 5)
        unpack(k, C, t + 6)
        unpack(k, C + 2, t + 7)
        k.i(f"v_pk_add_f32 v[{t}:{t + 1}], v[{t}:{t + 1}], v[{C}:{C + 1}]")
        k.i(f"v_pk_add_f32 v[{t + 2}:{t + 3}], v[{t + 2}:{t + 3}], v[{C + 2}:{C + 3}]")
        k.i(f"v_cvt_pk_bf16_f32 v{C}, v{t}, v{t + 1}")
        k.i(f"v_cvt_pk_bf16_f32 v{C + 1}, v{t + 2}, v{t + 3}")
        k.i(f"buffer_store_dwordx2 v[{C}:{C + 1}], v24, s[32:35], s16 offen")
        if I < 7:
            k.i(f"s_add_u32 s16, s16, {16 * 18432}")
    k.i("s_endpgm")

    for typ in (1, 2):
        k.label(f"K2_W{typ}")
        reset(k)
        pitch = 9216 if typ == 1 else 1152
        if typ == 1:
            k.i(f"s_load_dwordx4 s[4:7], s[0:1], {A_WG}")
            k.i(f"s_sub_u32 s12, s2, {NCV}")
            k.i("s_lshl_b32 s12, s12, 2")
            k.i("s_add_u32 s12, s12, s3")
            k.i("s_cmp_ge_u32 s12, 144")
            k.i("s_cselect_b32 s14, 1, 0")
            k.i("s_cselect_b32 s15, 144, 0")
            k.i("s_sub_u32 s12, s12, s15")
            k.i("s_lshr_b32 s15, s12, 3")
            k.i("s_and_b32 s16, s12, 7")
            k.i(f"s_mul_i32 s17, s15, {32 * 9216}")
            k.i("s_mul_i32 s18, s16, 1152")
            k.i("s_add_u32 s17, s17, s18")
            k.i(f"s_mul_i32 s18, s16, {18 * 18 * 4096}")
            k.i("s_lshl_b32 s19, s15, 12")
            k.i("s_add_u32 s18, s18, s19")
            k.i("s_lshl_b32 s19, s14, 11")
            k.i("s_add_u32 s18, s18, s19")
            k.i("s_waitcnt lgkmcnt(0)")
            k.i("s_cmp_eq_u32 s14, 1")
            k.i("s_cselect_b32 s20, s6, s4")
            k.i("s_cselect_b32 s21, s7, s5")
            k.i(f"s_mov_b32 s22, {D * F * 2}")
            k.i("s_mov_b32 s23, 0x00020000")
            ws_srd(k, 32, 10, WS_WT1, 2 * D * F * 2)
        else:
            k.i(f"s_load_dwordx2 s[4:5], s[0:1], {A_WD}")
            k.i(f"s_sub_u32 s12, s2, {NCV + NW1}")
            k.i("s_lshl_b32 s12, s12, 2")
            k.i("s_add_u32 s12, s12, s3")
            k.i(f"s_mul_i32 s17, s12, {32 * 1152}")
            k.i("s_mul_i32 s18, s12, 9216")
            k.i("s_waitcnt lgkmcnt(0)")
            k.srd(20, "s4", "s5", D * F * 2)
            ws_srd(k, 32, 10, WS_WT2, D * F * 2)
        k.i(f"s_mul_i32 s13, s3, {WAVE_LDS}")
        k.i("v_lshrrev_b32 v3, 3, v1")
        k.i(f"v_mul_u32_u24 v3, {pitch}, v3")
        k.i("v_lshrrev_b32 v5, 4, v1")
        k.i("v_lshlrev_b32 v4, 1, v5")
        k.i("v_and_b32 v6, 7, v1")
        k.i("v_xor_b32 v4, v4, v6")
        k.i("v_lshl_add_u32 v3, v4, 4, v3")
        for t9 in range(9):
            for qd in range(4):
                k.i(f"s_add_u32 m0, s13, {(t9 * 4 + qd) * 1024}")
                k.i(f"s_add_u32 s19, s17, {8 * qd * pitch + t9 * 128}")
                k.i("buffer_load_dwordx4 v3, s[20:23], s19 offen lds", tag=("t", t9))
        k.i("v_bfe_u32 v4, v1, 2, 2")
        k.i("v_and_b32 v6, 3, v1")
        se, sg = (4, 8) if typ == 1 else (16, 4)
        k.i(f"v_mul_u32_u24 v7, {sg}, v5")
        k.i("v_add_u32 v7, v7, v4")
        for e in range(2):
            k.i(f"v_add_u32 v16, {se * e}, v7")
            k.i("v_bfe_u32 v17, v16, 1, 2")
            k.i("v_lshlrev_b32 v18, 7, v16")
            k.i("v_lshl_add_u32 v18, v6, 3, v18")
            k.i("v_add_u32 v18, s13, v18")
            for T in range(4):
                k.i(f"v_xor_b32 v19, {T}, v17")
                k.i(f"v_lshl_add_u32 v{8 + 2 * T + e}, v19, 5, v18")
        k.i("v_lshlrev_b32 v2, 4, v1")
        for t9 in range(9):
            k.wait(vm=("t", t9))
            R = 32 + 16 * (t9 % 3)
            for T in range(4):
                for e in range(2):
                    r = R + 4 * T + 2 * e
                    k.i(f"ds_read_b64_tr_b16 v[{r}:{r + 1}], v{8 + 2 * T + e} offset:{t9 * 4096}", tag=("r", t9, T))
            for T in range(4):
                if typ == 1:
                    off = t9 * 2 * 18 * 4096 + (T >> 1) * 18 * 4096 + (T & 1) * 1024
                else:
                    dt36 = 4 * t9 + T
                    off = ((dt36 // 9) * 144 * 9 + dt36 % 9) * 1024
                k.i(f"s_add_u32 s19, s18, {off}")
                k.wait(lg=("r", t9, T))
                r = R + 4 * T
                k.i(f"buffer_store_dwordx4 v[{r}:{r + 3}], v2, s[32:35], s19 offen", tag="st")
        k.i("s_endpgm")
    k.label("K2_END")
    k.i("s_endpgm")
    return k, (NCV + NW1 + NW2, 256, 4 * WAVE_LDS)


def gen_k3():
    k = K("k3_kernel")
    k.i("s_cmp_ge_u32 s2, 256")
    k.i("s_cbranch_scc1 K3_END")
    k.i(f"s_load_dwordx2 s[4:5], s[0:1], {A_Q}")
    k.i(f"s_load_dwordx2 s[10:11], s[0:1], {A_WS}")
    k.i("v_lshrrev_b32 v2, 6, v0")
    k.i("v_and_b32 v1, 63, v0")
    k.i("v_readfirstlane_b32 s3, v2")
    k.i("v_and_b32 v3, 7, v1")
    k.i("v_lshrrev_b32 v4, 3, v0")
    k.i("v_mul_u32_u24 v5, 1152, v3")
    k.i("v_lshl_add_u32 v5, v4, 4, v5")
    k.i("s_mul_i32 s12, s2, 8*1152")
    k.i("s_lshr_b32 s13, s2, 1")
    k.i("s_and_b32 s14, s2, 1")
    k.i("s_mul_i32 s15, s13, 18432")
    k.i("s_lshl_b32 s16, s14, 4")
    k.i("s_add_u32 s16, s16, s15")
    k.i("v_lshlrev_b32 v6, 5, v0")
    k.i("v_lshlrev_b32 v7, 5, v4")
    k.i("s_lshl_b32 m0, s3, 10")
    k.i("s_waitcnt lgkmcnt(0)")
    k.srd(20, "s4", "s5", NACT)
    ws_srd(k, 24, 10, WS_YT, NACT)
    ws_srd(k, 28, 10, WS_MOD, 3456 * 4)
    ws_srd(k, 32, 10, WS_X1, NACT)
    ws_srd(k, 36, 10, WS_H2, NACT)
    k.i("buffer_load_dwordx4 v[8:11], v5, s[20:23], s12 offen", tag="x")
    k.i("buffer_load_dwordx4 v6, s[24:27], s16 offen lds", tag="y")
    SA, CA, GA, SB, CB = 16, 24, 32, 40, 48
    for sec, r in enumerate((SA, CA, GA, SB, CB)):
        k.i(f"s_mov_b32 s17, {sec * 2304}")
        k.i(f"buffer_load_dwordx4 v[{r}:{r + 3}], v7, s[28:31], s17 offen", tag=("m", sec))
        k.i(f"buffer_load_dwordx4 v[{r + 4}:{r + 7}], v7, s[28:31], s17 offen offset:16", tag=("m", sec))
    k.i("v_lshrrev_b32 v6, 4, v1")
    k.i("v_lshlrev_b32 v6, 1, v6")
    k.i("v_bfe_u32 v7, v1, 1, 1")
    k.i("v_add_u32 v6, v6, v7")
    k.i("v_bfe_u32 v7, v1, 2, 2")
    k.i("v_lshl_add_u32 v6, v6, 3, v7")
    k.i("v_lshlrev_b32 v6, 4, v6")
    k.i("v_and_b32 v7, 1, v1")
    k.i("v_lshl_add_u32 v6, v7, 3, v6")
    k.i("v_lshl_add_u32 v6, v2, 10, v6")
    k.i("v_lshlrev_b32 v3, 3, v3")
    k.i("v_lshl_add_u32 v7, v2, 6, v3")
    k.i("v_lshlrev_b32 v4, 8, v4")
    k.i("v_lshl_add_u32 v4, v3, 1, v4")
    k.i("s_lshl_b32 s17, s14, 7")
    k.i("s_add_u32 s15, s15, s17")
    X, T, PK, ST = 56, 64, 72, 80
    R0, R1, R2 = 76, 77, 78

    def pairs(base):
        return [f"v[{base + 2 * p}:{base + 2 * p + 1}]" for p in range(4)]

    def rnd(base, keep=None):
        pk = PK if keep is None else keep
        for p in range(4):
            k.i(f"v_cvt_pk_bf16_f32 v{pk + p}, v{base + 2 * p}, v{base + 2 * p + 1}")
        for p in range(4):
            unpack(k, base + 2 * p, pk + p)

    def xreduce(r):
        k.i(f"v_add_f32_dpp v{r}, v{r}, v{r} row_ror:8 row_mask:0xf bank_mask:0xf")
        k.i(f"v_mov_b32 v{R2}, v{r}")
        k.i(f"v_permlane16_swap_b32 v{r}, v{R2}")
        k.i(f"v_add_f32 v{r}, v{r}, v{R2}")
        k.i(f"v_mov_b32 v{R2}, v{r}")
        k.i(f"v_permlane32_swap_b32 v{r}, v{R2}")
        k.i(f"v_add_f32 v{r}, v{r}, v{R2}")

    def rnd1(r):
        k.i(f"v_cvt_pk_bf16_f32 v{r}, v{r}, v{r}")
        k.i(f"v_lshlrev_b32 v{r}, 16, v{r}")

    def layernorm(ps, scale, shift, msecs):
        k.i(f"v_pk_add_f32 v[{T}:{T + 1}], v[{X}:{X + 1}], v[{X + 2}:{X + 3}]")
        k.i(f"v_pk_add_f32 v[{T + 2}:{T + 3}], v[{X + 4}:{X + 5}], v[{X + 6}:{X + 7}]")
        k.i(f"v_pk_add_f32 v[{T}:{T + 1}], v[{T}:{T + 1}], v[{T + 2}:{T + 3}]")
        k.i(f"v_add_f32 v{R0}, v{T}, v{T + 1}")
        xreduce(R0)
        k.i(f"v_mul_f32 v{R0}, 0x3c800000, v{R0}")
        for e in range(8):
            k.i(f"v_sub_f32 v{T + e}, v{X + e}, v{R0}")
        k.i(f"v_mul_f32 v{R1}, v{T}, v{T}")
        k.i(f"v_mul_f32 v{R2}, v{T + 1}, v{T + 1}")
        for e in range(2, 8, 2):
            k.i(f"v_fmac_f32 v{R1}, v{T + e}, v{T + e}")
            k.i(f"v_fmac_f32 v{R2}, v{T + e + 1}, v{T + e + 1}")
        k.i(f"v_add_f32 v{R1}, v{R1}, v{R2}")
        xreduce(R1)
        k.i(f"ds_write_b64 v7, v[{R0}:{R1}] offset:{9216 + 1024 * ps}")
        k.wait_all(vm=False)
        k.i("s_barrier")
        for w in range(9):
            k.i(f"ds_read_b64 v[{ST + 2 * w}:{ST + 2 * w + 1}], v3 offset:{9216 + 1024 * ps + 64 * w}")
        k.wait_all(vm=False)
        k.i(f"v_pk_add_f32 v[{R0}:{R1}], v[{ST}:{ST + 1}], v[{ST + 2}:{ST + 3}]")
        for w in range(2, 9):
            k.i(f"v_pk_add_f32 v[{R0}:{R1}], v[{R0}:{R1}], v[{ST + 2 * w}:{ST + 2 * w + 1}]")
        k.i(f"v_mul_f32 v{R0}, 0x3de38e39, v{R0}")
        for w in range(9):
            k.i(f"v_sub_f32 v{ST + 2 * w}, v{ST + 2 * w}, v{R0}")
        k.i(f"v_mul_f32 v{R2}, v{ST}, v{ST}")
        for w in range(1, 9):
            k.i(f"v_fmac_f32 v{R2}, v{ST + 2 * w}, v{ST + 2 * w}")
        k.i(f"v_fmac_f32 v{R1}, 0x42800000, v{R2}")
        k.i(f"v_mul_f32 v{R1}, 0x3ae38e39, v{R1}")
        rnd1(R0)
        rnd1(R1)
        k.i(f"v_add_f32 v{R1}, 0x3727c5ac, v{R1}")
        rnd1(R1)
        k.i(f"v_sqrt_f32 v{R1}, v{R1}")
        rnd1(R1)
        k.i(f"v_rcp_f32 v{R1}, v{R1}")
        for e in range(8):
            k.i(f"v_sub_f32 v{T + e}, v{X + e}, v{R0}")
        rnd(T)
        for e in range(8):
            k.i(f"v_mul_f32 v{T + e}, v{T + e}, v{R1}")
        rnd(T)
        k.wait(vm=[("m", s_) for s_ in msecs])
        for a, b in zip(pairs(T), pairs(scale)):
            k.i(f"v_pk_mul_f32 {a}, {a}, {b}")
        rnd(T)
        for a, b in zip(pairs(T), pairs(shift)):
            k.i(f"v_pk_add_f32 {a}, {a}, {b}")

    k.wait(vm="x")
    for p in range(4):
        unpack(k, X + 2 * p, 8 + p)
    k.wait(vm="y")
    k.i("ds_read_b64_tr_b16 v[12:13], v6")
    k.i("ds_read_b64_tr_b16 v[14:15], v6 offset:64")
    layernorm(0, CA, SA, (0, 1))
    rnd(T)
    Y = SA
    for p in range(4):
        unpack(k, Y + 2 * p, 12 + p)
    for a, b in zip(pairs(T), pairs(Y)):
        k.i(f"v_pk_mul_f32 {a}, {a}, {b}")
    rnd(T)
    k.wait(vm=("m", 2))
    for a, b in zip(pairs(T), pairs(GA)):
        k.i(f"v_pk_mul_f32 {a}, {a}, {b}")
    rnd(T)
    for a, b in zip(pairs(X), pairs(T)):
        k.i(f"v_pk_add_f32 {a}, {a}, {b}")
    rnd(X, keep=8)
    k.i("buffer_store_dwordx4 v[8:11], v5, s[32:35], s12 offen", tag="st")
    layernorm(1, CB, SB, (3, 4))
    for p in range(4):
        k.i(f"v_cvt_pk_bf16_f32 v{12 + p}, v{T + 2 * p}, v{T + 2 * p + 1}")
    k.i("buffer_store_dwordx4 v[12:15], v4, s[36:39], s15 offen", tag="st")
    k.label("K3_END")
    k.i("s_endpgm")
    return k, (256, 576, 9216 + 2048)


def gen_k4(P=6, CK=2, NT=19, NS=8, DB=3):
    k = K("k4_kernel")
    TILE = 18432
    k.i("s_cmp_ge_u32 s2, 256")
    k.i("s_cbranch_scc1 K4_END")
    k.i("s_and_b32 s4, s2, 7")
    k.i("s_lshl_b32 s4, s4, 5")
    k.i("s_lshr_b32 s5, s2, 3")
    k.i("s_add_u32 s4, s4, s5")
    k.i("s_cmp_ge_u32 s4, 252")
    k.i("s_cbranch_scc1 K4_END")
    k.i(f"s_load_dwordx2 s[10:11], s[0:1], {A_WS}")
    k.i("v_lshrrev_b32 v2, 6, v0")
    k.i("v_and_b32 v1, 63, v0")
    k.i("v_readfirstlane_b32 s3, v2")
    k.i("v_lshlrev_b32 v1, 4, v1")
    k.i("s_mov_b32 s6, 0x24924925")
    k.i("s_mul_hi_u32 s5, s4, s6")
    k.i("s_mul_i32 s7, s5, 7")
    k.i("s_sub_u32 s7, s4, s7")
    k.i("s_lshl_b32 s7, s7, 7")
    k.i("s_mul_hi_u32 s7, s7, s6")
    k.i("s_lshl_b32 s8, s5, 2")
    k.i("s_add_u32 s8, s8, s3")
    k.i(f"s_mul_i32 s12, s8, {18 * 4096}")
    k.i(f"s_mul_i32 s13, s7, {TILE}")
    k.i(f"s_mul_i32 s14, s7, {144 * 1024}")
    k.i("s_lshl_b32 s9, s8, 10")
    k.i("s_add_u32 s14, s14, s9")
    n1 = P * CK // 4
    assert P * CK % 4 == 0 and CK & (CK - 1) == 0 and 18 % CK == 0
    lck = CK.bit_length() - 1
    OFF = 40
    for i in range(n1):
        k.i(f"s_mul_i32 s9, s3, {n1}")
        k.i(f"s_add_u32 s9, s9, {i}")
        k.i(f"s_lshr_b32 s15, s9, {lck}")
        k.i(f"s_mul_i32 s15, s15, {TILE}")
        k.i(f"s_and_b32 s9, s9, {CK - 1}")
        k.i("s_lshl_b32 s9, s9, 10")
        k.i(f"s_add_u32 s{OFF + i}, s15, s9")
        k.i(f"s_add_u32 s{OFF + 8 + i}, s{OFF + i}, s13")
    k.i("s_mul_i32 s15, s3, 4608")
    k.i("s_add_u32 s16, s15, s13")
    k.i("s_waitcnt lgkmcnt(0)")
    ws_srd(k, 20, 10, WS_WT1, 2 * D * F * 2)
    ws_srd(k, 24, 10, WS_H2, NACT)
    ws_srd(k, 28, 10, WS_HH, S * F * 2)

    def wreg(kk, j):
        if kk < 16:
            r = 16 * kk + 4 * j
            return f"a[{r}:{r + 3}]"
        r = 224 + 16 * (kk - 16) + 4 * j
        return f"v[{r}:{r + 3}]"

    def group(c):
        out = []
        for i in range(n1):
            out.append((f"s_add_u32 m0, s{OFF + i}, {c * CK * 1024}", None))
            out.append((f"s_add_u32 s17, s{OFF + 8 + i}, {c * CK * 1024}", None))
            out.append(("buffer_load_dwordx4 v1, s[24:27], s17 offen lds", ("c", c)))
        for kk in range(c * CK, (c + 1) * CK):
            out.append((f"s_add_u32 s18, s12, {kk * 4096}", None))
            for j in range(4):
                out.append((f"buffer_load_dwordx4 {wreg(kk, j)}, v1, s[20:23], s18 offen offset:{1024 * j}", ("c", c)))
        return out

    def tile_dma(t):
        out = [(f"s_add_u32 m0, s15, {(t % NS) * TILE}", None),
               (f"s_add_u32 s17, s16, {t * TILE}", None),
               ("s_mov_b32 exec_hi, 0", None),
               ("buffer_load_dwordx4 v1, s[24:27], s17 offen lds", ("t", t)),
               ("s_mov_b32 exec_hi, -1", None)]
        for i in range(4):
            out.append((f"buffer_load_dwordx4 v1, s[24:27], s17 offen offset:{512 + 1024 * i} lds", ("t", t)))
        return out

    NCH = 18 // CK
    per = n1 + 4 * CK
    UP0 = min(NCH, 60 // per)
    for c in range(UP0):
        for t, tag in group(c):
            k.i(t, tag=tag)

    steps = [(p, kk) for kk in range(18) for p in range(P)] + [(t, kk) for t in range(P, NT) for kk in range(18)]
    BR, NB = 16, DB + 1
    ACC0, NSETS = 64, 10
    free_sets = list(range(NSETS))
    setof = {}
    done_ev = set()
    hi = []
    lo = []
    next_tile_dma = P

    def ev_of(t, kk):
        return ("c", kk // CK) if t < P else ("t", t)

    def issue_read(n):
        nonlocal next_tile_dma
        t, kk = steps[n]
        ev = ev_of(t, kk)
        if ev not in done_ev:
            done_ev.add(ev)
            while any(tag == ev for g in hi for _, tag in g):
                for tx, tag in hi.pop(0):
                    k.i(tx, tag=tag)
            k.wait(vm=ev)
            k.i("s_barrier")
            if ev[0] == "c":
                c = ev[1]
                if c + UP0 < NCH:
                    g = group(c + UP0)
                    cur = []
                    for x in g:
                        if x[1] is None and cur and cur[-1][1] is not None:
                            hi.append(cur)
                            cur = []
                        cur.append(x)
                    hi.append(cur)
                elif next_tile_dma < min(NS, NT):
                    g = tile_dma(next_tile_dma)
                    hi.append(g[:5])
                    hi.extend([[x] for x in g[5:]])
                    next_tile_dma += 1
            else:
                x = ev[1]
                cnt = 0
                while next_tile_dma < NT and next_tile_dma <= x - 2 + NS and cnt < 2 and (x > P or next_tile_dma < NS):
                    g = tile_dma(next_tile_dma)
                    hi.append(g)
                    next_tile_dma += 1
                    cnt += 1
        r = BR + 4 * (n % NB)
        k.i(f"ds_read_b128 v[{r}:{r + 3}], v{3 + (t % NS) // 3} offset:{((t % NS) % 3) * TILE + kk * 1024}", tag=("B", n))

    k.i("v_mov_b32 v3, v1")
    k.i(f"v_add_u32 v4, {3 * TILE}, v1")
    k.i(f"v_add_u32 v5, {6 * TILE}, v1")

    def epilogue(t):
        A = ACC0 + 16 * setof[t]
        g = [A + i for i in range(8)]
        u = [A + 8 + i for i in range(8)]
        st = [[f"v_mul_f32 v{x}, 0x{NLOG2E:x}, v{x}" for x in g],
              [f"v_exp_f32 v{x}, v{x}" for x in g],
              [f"v_add_f32 v{x}, 1.0, v{x}" for x in g],
              [f"v_rcp_f32 v{x}, v{x}" for x in g],
              [f"v_mul_f32 v{x}, v{x}, v{y}" for x, y in zip(g, u)]]
        out = []
        for i in range(8 + 8):
            for s_ in range(5):
                j = i - 2 * s_
                if 0 <= j < 8:
                    out.append((st[s_][j], None))
        for p in range(4):
            out.append((f"v_cvt_pk_bf16_f32 v{u[p]}, v{g[2 * p]}, v{g[2 * p + 1]}", None))
        out.append((f"s_add_u32 s19, s14, {t * 144 * 1024}", None))
        out.append((f"buffer_store_dwordx4 v[{u[0]}:{u[3]}], v1, s[28:31], s19 offen", ("free", t)))
        return out

    def cost(tx):
        return 8 if tx.startswith(("v_exp", "v_rcp")) else 4

    for n in range(DB):
        issue_read(n)
    budget = 0
    delay = []
    slot = 0
    for n, (t, kk) in enumerate(steps):
        if kk == 0:
            setof[t] = free_sets.pop(0)
        k.wait(lg=("B", n))
        A = ACC0 + 16 * setof[t]
        r = BR + 4 * (n % NB)
        for j in range(4):
            C = A + 4 * j
            src = "0" if kk == 0 else f"v[{C}:{C + 3}]"
            k.i(f"v_mfma_f32_16x16x32_bf16 v[{C}:{C + 3}], {wreg(kk, j)}, v[{r}:{r + 3}], {src}")
            slot += 1
            budget = min(budget, 0) + 8
            if j == 0:
                budget -= 4
                if n + DB < len(steps):
                    issue_read(n + DB)
                    budget -= 4
            while delay and delay[0][0] <= slot:
                lo.extend(epilogue(delay.pop(0)[1]))
            while budget > 0 and (hi or lo):
                if hi:
                    for tx, tag in hi.pop(0):
                        k.i(tx, tag=tag)
                        budget -= 4
                else:
                    tx, tag = lo.pop(0)
                    k.i(tx, tag=tag)
                    budget -= cost(tx)
                    if tag:
                        free_sets.append(setof[tag[1]])
        if kk == 17:
            delay.append((slot + 4, t))
    for _, t in delay:
        lo.extend(epilogue(t))
    print("k4 tail fillers:", len(lo), file=sys.stderr)
    for tx, tag in lo:
        k.i(tx, tag=tag)
    k.label("K4_END")
    k.i("s_endpgm")
    k.desc = dict(accum=256, vgpr=512)
    return k, (256, 256, NS * TILE)


def gen_k5(NS=8, DBK=6, DA=5):
    k = K("k5_kernel")
    STG = 18432
    k.i("s_cmp_ge_u32 s2, 256")
    k.i("s_cbranch_scc1 K5_END")
    k.i(f"s_load_dwordx2 s[10:11], s[0:1], {A_WS}")
    k.i("s_and_b32 s4, s2, 7")
    k.i("s_lshl_b32 s4, s4, 5")
    k.i("s_lshr_b32 s5, s2, 3")
    k.i("s_add_u32 s4, s4, s5")
    k.i("v_lshrrev_b32 v2, 6, v0")
    k.i("v_and_b32 v6, 63, v0")
    k.i("v_readfirstlane_b32 s3, v2")
    k.i("v_lshlrev_b32 v1, 4, v6")
    k.i(f"v_add_u32 v2, {144 * 1024}, v1")
    k.i("s_lshr_b32 s5, s4, 6")
    k.i("s_bfe_u32 s6, s4, 0x40002")
    k.i("s_and_b32 s7, s4, 3")
    k.i("s_mul_i32 s12, s7, 144")
    k.i("s_mul_i32 s13, s5, 36")
    k.i("s_add_u32 s12, s12, s13")
    k.i("s_mul_i32 s12, s12, 9216")
    k.i("s_mul_i32 s15, s3, 4608")
    k.i("s_add_u32 s16, s15, s12")
    k.i("s_lshl_b32 s13, s6, 3")
    k.i("s_lshl_b32 s14, s3, 1")
    k.i("s_add_u32 s13, s13, s14")
    k.i(f"s_mul_i32 s14, s13, {144 * 1024}")
    k.i(f"s_mul_i32 s8, s5, {36 * 1024}")
    k.i("s_add_u32 s14, s14, s8")
    k.i("s_lshl_b32 s8, s5, 11")
    k.i("s_lshl_b32 s9, s13, 4")
    k.i("s_add_u32 s8, s8, s9")
    k.i("s_mul_i32 s8, s8, 2304")
    k.i("s_mul_i32 s9, s7, 576")
    k.i("s_add_u32 s8, s8, s9")
    k.i("s_waitcnt lgkmcnt(0)")
    ws_srd(k, 20, 10, WS_WT2, D * F * 2)
    ws_srd(k, 24, 10, WS_HH, S * F * 2)
    ws_srd(k, 28, 10, WS_PART, 4 * S * D * 4)

    def stage_dma(t):
        out = [(f"s_add_u32 m0, s15, {(t % NS) * STG}", None),
               (f"s_add_u32 s17, s16, {t * STG}", None),
               ("s_mov_b32 exec_hi, 0", None),
               ("buffer_load_dwordx4 v1, s[20:23], s17 offen lds", ("s", t)),
               ("s_mov_b32 exec_hi, -1", None)]
        for i in range(4):
            out.append((f"buffer_load_dwordx4 v1, s[20:23], s17 offen offset:{512 + 1024 * i} lds", ("s", t)))
        return out

    BR, NB = 16, DBK + 1
    AR, NA = BR + 8 * NB, DA + 1
    ACC = AR + 4 * NA

    def bload(kf):
        out = []
        if kf % 4 == 0:
            out.append((f"s_add_u32 s18, s14, {kf * 1024}", None))
        for j in range(2):
            r = BR + 8 * (kf % NB) + 4 * j
            out.append((f"buffer_load_dwordx4 v[{r}:{r + 3}], v{1 + j}, s[24:27], s18 offen offset:{(kf % 4) * 1024}", ("B", kf)))
        return out

    for t in range(NS - 1):
        for tx, tag in stage_dma(t):
            k.i(tx, tag=tag)
        for kf in (2 * t, 2 * t + 1):
            if kf < DBK:
                for tx, tag in bload(kf):
                    k.i(tx, tag=tag)
    next_stage = NS - 1
    k.i("v_mov_b32 v3, v1")
    k.i(f"v_add_u32 v4, {3 * STG}, v1")
    k.i(f"v_add_u32 v5, {6 * STG}, v1")
    k.i("v_and_b32 v7, 15, v6")
    k.i("v_mul_u32_u24 v7, 2304, v7")
    k.i("v_lshrrev_b32 v6, 4, v6")
    k.i("v_lshl_add_u32 v7, v6, 4, v7")
    steps = [(kf, dt) for kf in range(36) for dt in range(9)]
    hi = []
    done = set()

    def issue_read(n):
        nonlocal next_stage
        kf, dt = steps[n]
        t = kf // 2
        if t not in done:
            done.add(t)
            while any(tag == ("s", t) for g in hi for _, tag in g):
                for tx, tag in hi.pop(0):
                    k.i(tx, tag=tag)
            k.wait(vm=("s", t))
            k.i("s_barrier")
            if next_stage < 18 and next_stage <= t - 2 + NS:
                g = stage_dma(next_stage)
                hi.append(g[:5])
                hi.extend([[x] for x in g[5:]])
                next_stage += 1
        r = AR + 4 * (n % NA)
        sl = t % NS
        k.i(f"ds_read_b128 v[{r}:{r + 3}], v{3 + sl // 3} offset:{(sl % 3) * STG + ((kf & 1) * 9 + dt) * 1024}", tag=("A", n))

    for n in range(DA):
        issue_read(n)
    for n, (kf, dt) in enumerate(steps):
        if dt == 0:
            k.wait(vm=("B", kf), lg=("A", n))
        else:
            k.wait(lg=("A", n))
        a = AR + 4 * (n % NA)
        for j in range(2):
            C = ACC + 4 * (9 * j + dt)
            b = BR + 8 * (kf % NB) + 4 * j
            src = "0" if kf == 0 else f"v[{C}:{C + 3}]"
            k.i(f"v_mfma_f32_16x16x32_bf16 v[{C}:{C + 3}], v[{a}:{a + 3}], v[{b}:{b + 3}], {src}")
            if j == 0 and n + DA < len(steps):
                issue_read(n + DA)
            if j == 1:
                if dt == 0 and kf + DBK < 36:
                    for tx, tag in bload(kf + DBK):
                        k.i(tx, tag=tag)
                elif hi:
                    for tx, tag in hi.pop(0):
                        k.i(tx, tag=tag)
    for j in range(2):
        if j:
            k.i(f"s_add_u32 s8, s8, {16 * 2304}")
        for dt in range(9):
            C = ACC + 4 * (9 * j + dt)
            k.i(f"buffer_store_dwordx4 v[{C}:{C + 3}], v7, s[28:31], s8 offen offset:{64 * dt}")
    k.label("K5_END")
    k.i("s_endpgm")
    return k, (256, 256, NS * STG)


def gen_k6():
    k = K("k6_kernel")
    k.i("s_cmp_ge_u32 s2, 576")
    k.i("s_cbranch_scc1 K6_END")
    k.i(f"s_load_dwordx2 s[4:5], s[0:1], {A_OUT}")
    k.i(f"s_load_dwordx2 s[10:11], s[0:1], {A_WS}")
    k.i("s_lshl_b32 s3, s2, 8")
    k.i("v_add_u32 v1, s3, v0")
    k.i("s_mov_b32 s6, 0x38E38E4")
    k.i("v_mul_hi_u32 v2, v1, s6")
    k.i("v_mul_u32_u24 v2, 72, v2")
    k.i("v_sub_u32 v2, v1, v2")
    k.i("v_lshlrev_b32 v2, 5, v2")
    k.i("v_lshlrev_b32 v3, 5, v1")
    k.i("v_lshlrev_b32 v4, 4, v1")
    k.i("s_waitcnt lgkmcnt(0)")
    k.srd(20, "s4", "s5", NACT)
    ws_srd(k, 24, 10, WS_PART, 4 * S * D * 4)
    ws_srd(k, 28, 10, WS_X1, NACT)
    ws_srd(k, 32, 10, WS_MOD + 5 * 2304, 2304)
    for s_ in range(4):
        k.i(f"s_mov_b32 s7, {s_ * S * D * 4}")
        k.i(f"buffer_load_dwordx4 v[{8 + 8 * s_}:{11 + 8 * s_}], v3, s[24:27], s7 offen")
        k.i(f"buffer_load_dwordx4 v[{12 + 8 * s_}:{15 + 8 * s_}], v3, s[24:27], s7 offen offset:16")
    k.i("buffer_load_dwordx4 v[40:43], v4, s[28:31], 0 offen")
    k.i("buffer_load_dwordx4 v[44:47], v2, s[32:35], 0 offen")
    k.i("buffer_load_dwordx4 v[48:51], v2, s[32:35], 0 offen offset:16")
    k.wait_all()
    pr = lambda b, p: f"v[{b + 2 * p}:{b + 2 * p + 1}]"
    for p in range(4):
        k.i(f"v_pk_add_f32 {pr(8, p)}, {pr(8, p)}, {pr(16, p)}")
        k.i(f"v_pk_add_f32 {pr(24, p)}, {pr(24, p)}, {pr(32, p)}")
    for p in range(4):
        k.i(f"v_pk_add_f32 {pr(8, p)}, {pr(8, p)}, {pr(24, p)}")

    def rnd(base):
        for p in range(4):
            k.i(f"v_cvt_pk_bf16_f32 v{52 + p}, v{base + 2 * p}, v{base + 2 * p + 1}")
        for p in range(4):
            unpack(k, base + 2 * p, 52 + p)
    rnd(8)
    for p in range(4):
        k.i(f"v_pk_mul_f32 {pr(8, p)}, {pr(8, p)}, {pr(44, p)}")
    rnd(8)
    for p in range(4):
        unpack(k, 16 + 2 * p, 40 + p)
    for p in range(4):
        k.i(f"v_pk_add_f32 {pr(8, p)}, {pr(8, p)}, {pr(16, p)}")
    for p in range(4):
        k.i(f"v_cvt_pk_bf16_f32 v{52 + p}, v{8 + 2 * p}, v{9 + 2 * p}")
    k.i("buffer_store_dwordx4 v[52:55], v4, s[20:23], 0 offen")
    k.label("K6_END")
    k.i("s_endpgm")
    return k, (576, 256, 0)


def build(kernels, path):
    out = []
    for k, (g, b, lds) in kernels:
        out.append(f"; @launch kernel={k.name} grid=({g},1,1) block=({b},1,1) lds={lds}")
    out.append('.amdgcn_target "amdgcn-amd-amdhsa--gfx950"')
    out.append(".text")
    for k, _ in kernels:
        out.append(k.text())
    out.append('.section .rodata,"a"')
    for k, _ in kernels:
        out.append(k.descriptor(**getattr(k, "desc", {})))
    open(path, "w").write("\n".join(out))
    for k, _ in kernels:
        print(f"{k.name}: {k.n_ins} instr, {k.n_nop} nops, v{k.maxv} a{k.maxa} s{k.maxs}", file=sys.stderr)


if __name__ == "__main__":
    ks = [gen_k1(), gen_k2(), gen_k3(), gen_k4(), gen_k5(), gen_k6()]
    build(ks, sys.argv[1] if len(sys.argv) > 1 else "out.s")
```
